```python
import torch

def _softmax(x, axis=-1):
    return torch.softmax(x, dim=axis)
def _gelu(x):
    return torch.nn.functional.gelu(x, approximate="tanh")
def _silu(x):
    return torch.nn.functional.silu(x)
def _sigmoid(x):
    return torch.sigmoid(x)
def _layernorm(x, axis=-1, eps=1e-5):
    m = x.mean(dim=axis, keepdim=True)
    v = x.var(dim=axis, keepdim=True, unbiased=False)
    return (x - m) / torch.sqrt(v + eps)
def _scatter_add(tgt, idx, src, axis=0):
    return tgt.clone().index_add_(axis, idx, src)
def _segment_sum(src, seg, n):
    out = torch.zeros((n,) + src.shape[1:], dtype=src.dtype)
    return out.index_add_(0, seg, src)
def _pad(x, pw):
    flat = tuple(v for pair in reversed(pw) for v in pair)
    return torch.nn.functional.pad(x, flat)

kernel_name = 'standalone__mha_softmax__near_ridge'

def setup_inputs():

    _w = (lambda a: (lambda t: t.to(torch.bfloat16) if t.is_floating_point() else t)(torch.as_tensor(a)))
    B, H, Sq, Sk, D = 8, 16, 624, 1024, 256
    return {
        "q": _w((lambda *s: torch.randn(*s, dtype=torch.bfloat16) * 0.8)(B, H, Sq, D)),
        "k": _w((lambda *s: torch.randn(*s, dtype=torch.bfloat16) * 0.8)(B, H, Sk, D)),
        "v": _w((lambda *s: torch.randn(*s, dtype=torch.bfloat16) * 0.05)(B, H, Sk, D)),
    }

def reference(q, k, v):
    scale = q.shape[-1] ** -0.5
    scores = torch.einsum("bhqd,bhkd->bhqk", q, k) * scale
    p = _softmax(scores, axis=-1)
    return torch.einsum("bhqk,bhkd->bhqd", p, v)
```

```python
import subprocess, sys, os
sys.path.insert(0,'cdna_kernels')
from cdna_launch import with_harness_metadata

HEAD = """; @launch grid=(256,1,1) block=(256,1,1) lds={lds}
.amdgcn_target "amdgcn-amd-amdhsa--gfx950"
.text
.globl mb_kernel
.p2align 8
.type mb_kernel,@function
mb_kernel:
    s_load_dwordx4 s[4:7], s[0:1], 0      ; q,k
    s_load_dwordx4 s[8:11], s[0:1], 16    ; v,out
    s_load_dwordx2 s[12:13], s[0:1], 32   ; dbg
    s_waitcnt lgkmcnt(0)
    s_mov_b32 s16, s4
    s_and_b32 s17, s5, 0xffff
    s_mov_b32 s18, 40894464
    s_mov_b32 s19, 0x00020000
    s_mov_b32 s20, s12
    s_and_b32 s21, s13, 0xffff
    s_mov_b32 s22, 256
    s_mov_b32 s23, 0x00020000
    s_mov_b32 s24, s6
    s_and_b32 s25, s7, 0xffff
    s_mov_b32 s26, 67108864
    s_mov_b32 s27, 0x00020000
    s_lshl_b32 s3, s2, 16
    v_lshlrev_b32 v1, 4, v0
    v_add_u32 v1, s3, v1
"""
TAIL = """
    s_endpgm
.section .rodata,"a"
.p2align 6
.amdhsa_kernel mb_kernel
  .amdhsa_next_free_vgpr {nfv}
  .amdhsa_next_free_sgpr 102
  .amdhsa_accum_offset {acc}
  .amdhsa_group_segment_fixed_size 0
  .amdhsa_kernarg_size 48
  .amdhsa_user_sgpr_count 2
  .amdhsa_user_sgpr_kernarg_segment_ptr 1
  .amdhsa_system_sgpr_workgroup_id_x 1
.end_amdhsa_kernel
"""
def build(name, body, lds=0, nfv=512, acc=256):
    asm = HEAD.format(lds=lds) + body + TAIL.format(nfv=nfv, acc=acc)
    open(name+'.s','w').write(asm)
    full = with_harness_metadata(asm, 'mb_kernel', 6, launch_lists=True)
    open(name+'.h.s','w').write(full)
    r = subprocess.run(['clang','-x','assembler','-target','amdgcn-amd-amdhsa','-mcpu=gfx950',name+'.h.s','-o',name+'.co'],capture_output=True,text=True)
    if r.returncode:
        print(r.stderr); sys.exit(1)
    os.remove(name+'.h.s')

def timed(loop_body, n_iter, pre=""):
    s = ""
    for i in range(16):
        s += f"    buffer_load_dwordx4 v[{64+4*i}:{67+4*i}], v1, s[16:19], 0 offen offset:{(i*4096)%4096}\n"
        s += f"    v_add_u32 v1, 4096, v1\n"
    s += "    s_waitcnt vmcnt(0)\n"
    for i in range(256):
        s += f"    v_accvgpr_write_b32 a{i}, 0\n"
    for i in range(128,256):
        s += f"    v_mov_b32 v{i}, 0\n"
    for i in range(2,64):
        s += f"    v_mov_b32 v{i}, 1.0\n"
    s += pre
    s += f"""    s_barrier
    s_mov_b32 s30, {n_iter}
    s_memtime s[32:33]
    s_memrealtime s[34:35]
    s_waitcnt lgkmcnt(0)
.p2align 6
L_loop:
{loop_body}
    s_sub_u32 s30, s30, 1
    s_cmp_lg_u32 s30, 0
    s_cbranch_scc1 L_loop
    s_nop 15
    s_nop 15
    s_memtime s[36:37]
    s_memrealtime s[38:39]
    s_waitcnt lgkmcnt(0)
    s_sub_u32 s36, s36, s32
    s_sub_u32 s38, s38, s34
    s_cmp_lg_u32 s2, 0
    s_cbranch_scc1 L_end
    v_cmp_eq_u32 vcc, 0, v0
    s_and_saveexec_b64 s[40:41], vcc
    s_cbranch_execz L_end
    v_mov_b32 v2, s36
    v_mov_b32 v3, s38
    v_mov_b32 v4, 0
    buffer_store_dwordx2 v[2:3], v4, s[20:23], 0 offen
    s_waitcnt vmcnt(0)
L_end:
"""
    return s
```

```python
from mb import *
def m16(i):
    a = (i%16)*4
    return f"    v_mfma_f32_16x16x32_bf16 a[{a}:{a+3}], v[{64+(i%8)*4}:{67+(i%8)*4}], v[{96+(i%5)*4}:{99+(i%5)*4}], a[{a}:{a+3}]\n"
def m32(i):
    a = (i%8)*16
    return f"    v_mfma_f32_32x32x16_bf16 a[{a}:{a+15}], v[{64+(i%8)*4}:{67+(i%8)*4}], v[{96+(i%5)*4}:{99+(i%5)*4}], a[{a}:{a+15}]\n"
fill = {
 'fma': lambda j: f"    v_fma_f32 v{128+j%32}, v{2+j%16}, v{20+j%16}, v{128+j%32}\n",
 'exp': lambda j: f"    v_exp_f32 v{160+j%32}, v{2+j%16}\n",
 'add': lambda j: f"    v_add_f32 v{128+j%32}, v{2+j%16}, v{128+j%32}\n",
 'cvt': lambda j: f"    v_cvt_pk_bf16_f32 v{160+j%32}, v{2+j%16}, v{20+j%16}\n",
 'ds128': lambda j: f"    ds_read_b128 v[{192+(j%8)*4}:{195+(j%8)*4}], v40 offset:{(j%16)*1024}\n",
 'dstr': lambda j: f"    ds_read_b64_tr_b16 v[{192+(j%16)*2}:{193+(j%16)*2}], v41 offset:{(j%16)*512}\n",
 'salu': lambda j: f"    s_add_u32 s{50+j%8}, s{50+j%8}, 1\n",
 'nop': lambda j: f"    s_nop 0\n",
 'pkadd': lambda j: f"    v_pk_add_f32 v[{128+(j%16)*2}:{129+(j%16)*2}], v[{2+(j%8)*2}:{3+(j%8)*2}], v[{128+(j%16)*2}:{129+(j%16)*2}]\n",
 'pkfma': lambda j: f"    v_pk_fma_f32 v[{128+(j%16)*2}:{129+(j%16)*2}], v[{2+(j%8)*2}:{3+(j%8)*2}], v[{20+(j%8)*2}:{21+(j%8)*2}], v[{128+(j%16)*2}:{129+(j%16)*2}]\n",
 'or3': lambda j: f"    v_or3_b32 v{128+j%32}, v{2+j%16}, v{20+j%16}, v{128+j%32}\n",
}
pre = "    v_lshlrev_b32 v40, 4, v0\n    v_and_b32 v40, 0x3ff, v40\n    v_lshlrev_b32 v41, 3, v0\n    v_and_b32 v41, 0x1ff, v41\n"
import sys
cfgs = []
def mk(name, mf, nm, pattern, n_iter):
    body=""; j=0
    for i in range(nm):
        body += mf(i)
        for p in pattern[i%len(pattern)]:
            body += fill[p](j); j+=1
        if any(p.startswith('ds') for pp in pattern for p in pp) and i%8==7:
            body += "    s_waitcnt lgkmcnt(4)\n"
    build(name, timed(body, n_iter, pre), lds=65536)
    cfgs.append((name, nm*n_iter))
N16=64; I16=80
N32=32; I32=80
mk('m16_0', m16, N16, [[]], I16)
mk('m16_1fma', m16, N16, [['fma']], I16)
mk('m16_2fma', m16, N16, [['fma','fma']], I16)
mk('m16_3fma', m16, N16, [['fma','fma','fma']], I16)
mk('m16_1exp', m16, N16, [['exp']], I16)
mk('m16_exp_fma', m16, N16, [['exp','fma']], I16)
mk('m16_2fma_ds', m16, N16, [['fma','fma','ds128'],['fma','fma'],['fma','fma'],['fma','fma']], I16)
mk('m16_2fma_salu', m16, N16, [['fma','fma','salu']], I16)
mk('m16_fma_ds', m16, N16, [['fma','ds128'],['fma','dstr']], I16)
mk('m16_pkadd', m16, N16, [['pkadd']], I16)
mk('m16_2pkadd', m16, N16, [['pkadd','pkadd']], I16)
mk('m16_pkfma_fma', m16, N16, [['pkfma','fma']], I16)
mk('m16_cvt2', m16, N16, [['cvt','cvt']], I16)
mk('m32_0', m32, N32, [[]], I32)
mk('m32_4fma', m32, N32, [['fma']*4], I32)
mk('m32_5fma', m32, N32, [['fma']*5], I32)
mk('m32_6fma', m32, N32, [['fma']*6], I32)
mk('m32_7fma', m32, N32, [['fma']*7], I32)
mk('m32_3exp', m32, N32, [['exp']*3], I32)
mk('m32_2exp2fma', m32, N32, [['exp','fma','exp','fma']], I32)
mk('m32_2exp2fma_ds', m32, N32, [['exp','fma','exp','fma','ds128']], I32)
open('run1.sh','w').write("\n".join(f"./bench {n}.co mb_kernel 256 256 65536 20 1 && echo nmfma {c}" for n,c in cfgs)+"\n")
print(" ".join(f'"work/{n}.co"' for n,_ in cfgs).replace(' ',', '))
```

```python
from mb import *
import mb1
from mb1 import m16, m32, fill, pre
cfgs=[]
fill['dma'] = lambda j: f"    buffer_load_dwordx4 v42, s[24:27], s44 offen lds\n"
fill['m0'] = lambda j: f"    s_add_u32 m0, s45, {(j%8)*1024}\n"
fill['soff'] = lambda j: f"    s_add_u32 s44, s44, 4096\n"
fill['w8'] = lambda j: f"    s_waitcnt vmcnt(8)\n"
fill['l8'] = lambda j: f"    s_waitcnt lgkmcnt(8)\n"
fill['gld'] = lambda j: f"    buffer_load_dwordx4 v[{224+(j%8)*4}:{227+(j%8)*4}], v42, s[24:27], s44 offen\n"
pre2 = pre + """    v_lshlrev_b32 v42, 4, v0
    s_lshl_b32 s44, s2, 18
    v_lshrrev_b32 v43, 6, v0
    s_nop 1
    v_readfirstlane_b32 s45, v43
    s_nop 3
    s_lshl_b32 s45, s45, 13
    s_add_u32 s45, s45, 32768
    s_mov_b32 m0, s45
"""
def mk(name, mf, nm, pattern, n_iter):
    body=""; j=0
    for i in range(nm):
        body += mf(i)
        for p in pattern[i%len(pattern)]:
            body += fill[p](j); j+=1
    body += "    s_lshl_b32 s44, s2, 18\n"
    build(name, timed(body, n_iter, pre2), lds=65536)
    cfgs.append((name, nm*n_iter))
N16=64; I16=80
E=[]
mk('n16_ds', m16, N16, [['ds128']], I16)
mk('n16_ds_half', m16, N16, [['ds128'],E], I16)
mk('n16_tr', m16, N16, [['dstr']], I16)
mk('n16_2tr', m16, N16, [['dstr','dstr'],E], I16)
mk('n16_fma_ds_half', m16, N16, [['fma','ds128'],['fma','fma']], I16)
mk('n16_fma_tr', m16, N16, [['fma','dstr']], I16)
mk('n16_fma_tr_half', m16, N16, [['fma','dstr'],['fma','fma']], I16)
mk('n16_ds_fma_q', m16, N16, [['ds128','fma'],['fma','fma'],['fma','fma'],['fma','fma']], I16)
mk('n16_exp_ds_q', m16, N16, [['ds128','fma'],['exp'],['fma','fma'],['exp']], I16)
mk('n16_salu2', m16, N16, [['salu','salu']], I16)
mk('n16_salu_fma', m16, N16, [['salu','fma']], I16)
mk('n16_l8_fma', m16, N16, [['l8','fma']], I16)
mk('n16_dma16', m16, N16, [['m0'],['dma'],['soff']]+[E]*12+[['w8']], I16)
mk('n16_dma16_fma', m16, N16, [['m0','fma'],['dma','fma'],['soff','fma']]+[['fma','fma']]*12+[['w8','fma']], I16)
mk('n16_dma8', m16, N16, [['m0'],['dma'],['soff']]+[E]*4+[['w8']], I16)
mk('n16_gld16', m16, N16, [['gld'],['soff']]+[E]*13+[['w8']], I16)
mk('n16_gld16_fma', m16, N16, [['gld','fma'],['soff','fma']]+[['fma','fma']]*13+[['w8','fma']], I16)
open('run3.sh','w').write("\n".join(f"./bench {n}.co mb_kernel 256 256 65536 20 1 && echo nmfma {c}" for n,c in cfgs)+"\n")
print(" ".join(f'"work/{n}.co"' for n,_ in cfgs).replace(' ',', '))
```

```python
from mb import *
import mb3
from mb3 import m16, m32, fill, pre2
cfgs=[]
fill['dot2'] = lambda j: f"    v_dot2_f32_bf16 v{128+j%32}, v{2+j%16}, v{20+j%16}, v{128+j%32}\n"
fill['adde64'] = lambda j: f"    v_add_f32_e64 v{128+j%32}, v{2+j%16}, v{128+j%32}\n"
fill['expe64'] = lambda j: f"    v_exp_f32_e64 v{160+j%32}, v{2+j%16}\n"
fill['max3'] = lambda j: f"    v_max3_f32 v{128+j%32}, v{2+j%16}, v{20+j%16}, v{128+j%32}\n"
fill['dsa'] = lambda j: f"    ds_read_b128 a[{192+(j%8)*4}:{195+(j%8)*4}], v40 offset:{(j%16)*1024}\n"
fill['bar'] = lambda j: f"    s_barrier\n"
def mk(name, mf, nm, pattern, n_iter):
    body=""; j=0
    for i in range(nm):
        body += mf(i)
        for p in pattern[i%len(pattern)]:
            body += fill[p](j); j+=1
    body += "    s_lshl_b32 s44, s2, 18\n"
    build(name, timed(body, n_iter, pre2), lds=65536)
    cfgs.append((name, nm*n_iter))
N16=64; I16=80
E=[]
mk('p16_0', m16, N16, [E], I16)
mk('p16_ds_exp', m16, N16, [['ds128','exp'],E], I16)
mk('p16_salu_exp', m16, N16, [['salu','exp'],E], I16)
mk('p16_exp_salu', m16, N16, [['exp','salu'],E], I16)
mk('p16_fma_salu', m16, N16, [['fma','salu']], I16)
mk('p16_salu_ds', m16, N16, [['salu','ds128'],E], I16)
mk('p16_l8_ds', m16, N16, [['l8','ds128'],E], I16)
mk('p16_ds_l8', m16, N16, [['ds128','l8'],E], I16)
mk('p16_dot2', m16, N16, [['dot2']], I16)
mk('p16_dot2_fma', m16, N16, [['dot2','fma']], I16)
mk('p16_3_1', m16, N16, [['fma','fma','fma'],['fma']], I16)
mk('p16_3_0', m16, N16, [['fma','fma','fma'],E], I16)
mk('p16_4_0', m16, N16, [['fma','fma','fma','fma'],E], I16)
mk('p16_expfma_fma', m16, N16, [['exp','fma'],['fma']], I16)
mk('p16_expfma_0', m16, N16, [['exp','fma'],E], I16)
mk('p16_fmaexp_0', m16, N16, [['fma','exp'],E], I16)
mk('p16_fma_dma', m16, N16, [['fma','m0'],['fma','dma'],['fma','soff']]+[['fma','fma']]*12+[['w8','fma']], I16)
mk('p16_dsa_fma', m16, N16, [['dsa','fma'],['fma','fma']], I16)
mk('p16_bar32', m16, N16, [['bar']]+[E]*31, I16)
mk('p16_bar32_fma', m16, N16, [['bar','fma']]+[['fma','fma']]*31, I16)
mk('p16_fma_then_ds', m16, N16, [['fma','fma'],['ds128','fma']], I16)
mk('p16_exp_then_ds', m16, N16, [['exp'],['ds128','fma']], I16)
open('run4.sh','w').write("\n".join(f"./bench {n}.co mb_kernel 256 256 65536 20 1 && echo nmfma {c}" for n,c in cfgs)+"\n")
print(" ".join(f'"work/{n}.co"' for n,_ in cfgs).replace(' ',', '))
```

```python
from mb import *
import mb4
from mb4 import m16, m32, fill, pre2
cfgs=[]
def mk(name, mf, nm, pattern, n_iter):
    body=""; j=0
    for i in range(nm):
        body += mf(i)
        for p in pattern[i%len(pattern)]:
            body += fill[p](j); j+=1
    body += "    s_lshl_b32 s44, s2, 18\n"
    build(name, timed(body, n_iter, pre2), lds=65536)
    cfgs.append((name, nm*n_iter))
N16=64; I16=80
E=[]
mk('q16_0', m16, N16, [E], I16)
mk('q16_s_f_f', m16, N16, [['salu','fma','fma']], I16)
mk('q16_l8_f_f', m16, N16, [['l8','fma','fma']], I16)
mk('q16_nop_f_f', m16, N16, [['nop','fma','fma']], I16)
mk('q16_s_ds_f', m16, N16, [['salu','ds128','fma'],['fma','fma']], I16)
mk('q16_l8_ds_f', m16, N16, [['l8','ds128','fma'],['fma','fma']], I16)
mk('q16_ds_s_f', m16, N16, [['ds128','salu','fma'],['fma','fma']], I16)
mk('q16_ds_f_s', m16, N16, [['ds128','fma','salu'],['fma','fma']], I16)
mk('q16_s_s_f', m16, N16, [['salu','salu','fma']], I16)
mk('q16_s_s_s', m16, N16, [['salu','salu','salu']], I16)
mk('q16_s_s_s_s', m16, N16, [['salu','salu','salu','salu'],E], I16)
mk('q16_f_s_f', m16, N16, [['fma','salu','fma']], I16)
mk('q16_l8_exp', m16, N16, [['l8','exp']], I16)
mk('q16_dma_f_f', m16, N16, [['m0','fma','fma'],['dma','fma','fma'],['soff','fma','fma']]+[['fma','fma']]*12+[['w8','fma','fma']], I16)
mk('q16_dma_f', m16, N16, [['m0','fma','fma'],['dma','fma'],['soff','fma','fma']]+[['fma','fma']]*12+[['w8','fma','fma']], I16)
mk('q16_dma_alone', m16, N16, [['m0','fma','fma'],['dma'],['soff','fma','fma']]+[['fma','fma']]*12+[['w8','fma','fma']], I16)
mk('q16_tr_f', m16, N16, [['dstr','fma']], I16)
mk('q16_ds_cvt', m16, N16, [['ds128','cvt'],['add','add']], I16)
mk('q16_bar_e', m16, N16, [['bar'],E,E]+[['fma','fma']]*29, I16)
mk('q16_e_bar', m16, N16, [E,E,['bar']]+[['fma','fma']]*29, I16)
mk('q16_e_bar_e', m16, N16, [E,['bar'],E]+[['fma','fma']]*29, I16)
open('run5.sh','w').write("\n".join(f"./bench {n}.co mb_kernel 256 256 65536 20 1 && echo nmfma {c}" for n,c in cfgs)+"\n")
print(" ".join(f'"work/{n}.co"' for n,_ in cfgs).replace(' ',', '))
```

```python
from mb import *
WS = """
    s_load_dwordx2 s[52:53], s[0:1], 40
    s_waitcnt lgkmcnt(0)
    s_mov_b32 s36, s52
    s_and_b32 s37, s53, 0xffff
    s_mov_b32 s38, 16384
    s_mov_b32 s39, 0x00020000
    s_mov_b32 s28, s10
    s_and_b32 s29, s11, 0xffff
    s_mov_b32 s30, 40894464
    s_mov_b32 s31, 0x00020000
    v_lshrrev_b32 v2, 6, v0
    v_and_b32 v3, 63, v0
    s_nop 1
    v_readfirstlane_b32 s40, v2
    s_nop 3
    s_lshl_b32 s41, s2, 2
    s_add_u32 s41, s41, s40
    s_mul_i32 s41, s41, 39936
    s_lshl_b32 s42, s40, 15      ; lds base per wave 32KB
"""
pats = {
 'frag': ("v_and_b32 v4, 15, v3\n v_lshlrev_b32 v4, 9, v4\n v_lshrrev_b32 v5, 4, v3\n v_lshl_add_u32 v4, v5, 4, v4\n",
          [t*8192 + s*64 for s in range(8) for t in range(5)]),
 'fragt': ("v_and_b32 v4, 15, v3\n v_lshlrev_b32 v4, 9, v4\n v_lshrrev_b32 v5, 4, v3\n v_lshl_add_u32 v4, v5, 4, v4\n",
          [t*8192 + s*64 for t in range(5) for s in range(8)]),
 'lin': ("v_lshlrev_b32 v4, 4, v3\n", [i*1024 for i in range(40)]),
 'k4x256': ("v_and_b32 v4, 3, v3\n v_lshlrev_b32 v4, 4, v4\n v_lshrrev_b32 v5, 4, v3\n v_lshl_add_u32 v4, v5, 6, v4\n v_bfe_u32 v5, v3, 2, 2\n v_lshl_add_u32 v4, v5, 9, v4\n",
          [(i//2)*2048 + (i%2)*256 for i in range(40)]),
 'xy': ("v_and_b32 v4, 7, v3\n v_lshlrev_b32 v4, 9, v4\n v_lshrrev_b32 v5, 4, v3\n v_lshl_add_u32 v4, v5, 4, v4\n v_bfe_u32 v5, v3, 3, 1\n v_lshl_add_u32 v4, v5, 6, v4\n",
          [(i//4)*4096 + (i%4)*128 for i in range(40)]),
 'r8x128': ("v_lshrrev_b32 v4, 3, v3\n v_lshlrev_b32 v4, 9, v4\n v_and_b32 v5, 7, v3\n v_lshl_add_u32 v4, v5, 4, v4\n",
          [(i//4)*4096 + (i%4)*128 for i in range(40)]),
}
names=[]
for mode in ('ld','dma','st'):
  for pn,(code,offs) in pats.items():
    b = WS + code + "    v_add_u32 v4, s41, v4\n"
    b += "    s_memrealtime s[60:61]\n    s_memtime s[62:63]\n    s_waitcnt lgkmcnt(0)\n"
    for i,o in enumerate(offs):
        b += f"    s_mov_b32 s43, {o}\n"
        if mode=='ld': b += f"    buffer_load_dwordx4 v[{64+4*i}:{67+4*i}], v4, s[16:19], s43 offen\n"
        elif mode=='dma': b += f"    s_add_u32 m0, s42, {(i%32)*1024}\n    s_nop 0\n    buffer_load_dwordx4 v4, s[16:19], s43 offen lds\n"
        else: b += f"    buffer_store_dwordx4 v[{64+4*i}:{67+4*i}], v4, s[28:31], s43 offen\n"
    b += "    s_memrealtime s[64:65]\n    s_memtime s[66:67]\n    s_waitcnt vmcnt(0) lgkmcnt(0)\n    s_barrier\n"
    b += "    s_memrealtime s[68:69]\n    s_memtime s[70:71]\n    s_waitcnt lgkmcnt(0)\n"
    b += "    s_cmp_lg_u32 s40, 0\n    s_cbranch_scc1 L_end\n    s_lshl_b32 s44, s2, 6\n"
    for k in range(3):
        b += f"    v_mov_b32 v0, s{60+4*k}\n    v_mov_b32 v1, {4*k}\n    buffer_store_dword v0, v1, s[36:39], s44 offen\n    s_nop 3\n"
        if k: b += f"    s_sub_u32 s45, s{62+4*k}, s{58+4*k}\n    v_mov_b32 v0, s45\n    v_mov_b32 v1, {32+4*k}\n    buffer_store_dword v0, v1, s[36:39], s44 offen\n    s_nop 3\n"
    b += "L_end:\n"
    n=f"L_{mode}_{pn}"; build(n, b, lds=131072); names.append(n)
open('run6.sh','w').write("\n".join(f"for fl in 1 0; do WSTAB=1 ./bench {n}.co mb_kernel 256 256 131072 20 $fl | egrep 'min.*us|col[012]:' | tr '\\n' ' '; echo; done" for n in names)+"\n")
print(" ".join(f'"work/{n}.co"' for n in names).replace(' ',', '))
```

```python
from mb import *
import mb6
from mb6 import WS, pats
names=[]
for mode in ('ld','dma','st'):
  for pn in pats:
   for fl in ('nt',):
    code,offs = pats[pn]
    b = WS + code + "    v_add_u32 v4, s41, v4\n"
    b += "    s_memrealtime s[60:61]\n    s_memtime s[62:63]\n    s_waitcnt lgkmcnt(0)\n"
    for i,o in enumerate(offs):
        b += f"    s_mov_b32 s43, {o}\n"
        if mode=='ld': b += f"    buffer_load_dwordx4 v[{64+4*i}:{67+4*i}], v4, s[16:19], s43 offen {fl}\n"
        elif mode=='dma': b += f"    s_add_u32 m0, s42, {(i%32)*1024}\n    s_nop 0\n    buffer_load_dwordx4 v4, s[16:19], s43 offen {fl} lds\n"
        else: b += f"    buffer_store_dwordx4 v[{64+4*i}:{67+4*i}], v4, s[28:31], s43 offen {fl}\n"
    b += "    s_memrealtime s[64:65]\n    s_memtime s[66:67]\n    s_waitcnt vmcnt(0) lgkmcnt(0)\n    s_barrier\n"
    b += "    s_memrealtime s[68:69]\n    s_memtime s[70:71]\n    s_waitcnt lgkmcnt(0)\n"
    b += "    s_cmp_lg_u32 s40, 0\n    s_cbranch_scc1 L_end\n    s_lshl_b32 s44, s2, 6\n"
    for k in range(3):
        b += f"    v_mov_b32 v0, s{60+4*k}\n    v_mov_b32 v1, {4*k}\n    buffer_store_dword v0, v1, s[36:39], s44 offen\n    s_nop 3\n"
        if k: b += f"    s_sub_u32 s45, s{62+4*k}, s{58+4*k}\n    v_mov_b32 v0, s45\n    v_mov_b32 v1, {32+4*k}\n    buffer_store_dword v0, v1, s[36:39], s44 offen\n    s_nop 3\n"
    b += "L_end:\n"
    n=f"G_{mode}_{pn}_{fl.replace(' ','')}"; build(n, b, lds=131072); names.append(n)
open('run9.sh','w').write("\n".join(f"for fl in 1; do WSTAB=1 ./bench {n}.co mb_kernel 256 256 131072 20 $fl | egrep 'min.*us|col[012]:' | tr '\\n' ' '; echo; done" for n in names)+"\n")
print(" ".join(f'"work/{n}.co"' for n in names).replace(' ',', '))
```

```python
from mb import *
import mb4
from mb4 import m16, fill, pre2
cfgs=[]
fill['pkmul'] = lambda j: f"    v_pk_mul_f32 v[{128+(j%16)*2}:{129+(j%16)*2}], v[{2+(j%8)*2}:{3+(j%8)*2}], v[{20+(j%8)*2}:{21+(j%8)*2}]\n"
fill['mul'] = lambda j: f"    v_mul_f32 v{128+j%32}, v{2+j%16}, v{20+j%16}\n"
fill['dsw128'] = lambda j: f"    ds_write_b128 v40, a[{(j%16)*4}:{(j%16)*4+3}] offset:{(j%16)*1024}\n"
fill['dsw64'] = lambda j: f"    ds_write_b64 v41, v[{64+(j%16)*2}:{65+(j%16)*2}] offset:{(j%16)*512}\n"
fill['accr'] = lambda j: f"    v_accvgpr_read_b32 v{128+j%32}, a{j%64}\n"
fill['M'] = lambda j: m16(j)
def mk(name, pattern, reps=64, n_iter=40):
    body=""; j=0
    for i in range(reps):
        for p in pattern:
            body += fill[p](j); j+=1
    body += "    s_waitcnt lgkmcnt(0)\n"
    build(name, timed(body, n_iter, pre2), lds=65536)
    cfgs.append((name, reps*n_iter))
mk('z_mul', ['mul'])
mk('z_pkmul', ['pkmul'])
mk('z_cvt', ['cvt'])
mk('z_accr', ['accr'])
mk('z_ds', ['ds128'])
mk('z_tr', ['dstr'])
mk('z_dsw128', ['dsw128'])
mk('z_dsw64', ['dsw64'])
mk('z_ds_mul', ['ds128','mul'])
mk('z_ds_mul3', ['ds128','mul','mul','mul'])
mk('z_ds2_mul6', ['ds128','ds128']+['mul']*6)
mk('z_ds_mul3_nop', ['ds128','mul','mul','mul','nop'])
mk('z_dsw128_mul3', ['dsw128','mul','mul','mul'])
mk('z_dsw128_mul7', ['dsw128']+['mul']*7)
mk('z_M_pk8', ['M']+['pkmul']*8)
mk('z_M_mul4_pk8', ['M']+['mul']*4+['pkmul']*8)
mk('z_M_mul12', ['M']+['mul']*12)
mk('z_M4_pk8', ['M']*4+['pkmul']*8)
mk('z_M_tr_tr_mul', ['M','dstr','dstr','mul'])
mk('z_M_tr_mul_mul_mul', ['M','dstr','mul','mul','mul'])
open('run10.sh','w').write("\n".join(f"./bench {n}.co mb_kernel 256 256 65536 10 0 && echo n {c}" for n,c in cfgs)+"\n")
```

```python
from mb import *
import mb6
from mb6 import WS, pats
names=[]
for stride in (39936, 40960, 39424):
  for rot in (0,1):
    pn='k4x256'; fl='nt'
    code,offs = pats[pn]
    ws = WS.replace("39936", str(stride))
    b = ws + code + "    v_add_u32 v4, s41, v4\n"
    b += "    s_lshl_b32 s46, s2, 2\n    s_add_u32 s46, s46, s40\n    s_mul_i32 s46, s46, 13\n    s_lshr_b32 s46, s46, 2\n    s_and_b32 s46, s46, 3\n    s_lshl_b32 s46, s46, 13\n" if rot else "    s_mov_b32 s46, 0\n"
    b += "    s_memrealtime s[60:61]\n    s_memtime s[62:63]\n    s_waitcnt lgkmcnt(0)\n"
    for i,o in enumerate(offs):
        if o < 32768: b += f"    s_add_u32 s43, s46, {o}\n    s_and_b32 s43, s43, 0x7fff\n"
        else: b += f"    s_mov_b32 s43, {o}\n"
        b += f"    s_add_u32 m0, s42, {(i%32)*1024}\n    s_nop 0\n    buffer_load_dwordx4 v4, s[16:19], s43 offen {fl} lds\n"
    b += "    s_memrealtime s[64:65]\n    s_memtime s[66:67]\n    s_waitcnt vmcnt(0) lgkmcnt(0)\n    s_barrier\n"
    b += "    s_memrealtime s[68:69]\n    s_memtime s[70:71]\n    s_waitcnt lgkmcnt(0)\n"
    b += "    s_cmp_lg_u32 s40, 0\n    s_cbranch_scc1 L_end\n    s_lshl_b32 s44, s2, 6\n"
    for k in range(3):
        b += f"    v_mov_b32 v0, s{60+4*k}\n    v_mov_b32 v1, {4*k}\n    buffer_store_dword v0, v1, s[36:39], s44 offen\n    s_nop 3\n"
    b += "L_end:\n"
    n=f"H_{stride}_{rot}"; build(n, b, lds=131072); names.append(n)
open('run11.sh','w').write("for r in 1 2; do\n"+"\n".join(f"WSTAB=1 ./bench {n}.co mb_kernel 256 256 131072 30 1 | egrep 'min.*us|col[012]:' | tr '\\n' ' '; echo" for n in names)+"\ndone\n")
```

```python
from mb import *
cfgs=[]
def gen(name, seq, n_iter=64):
    body="".join(f"    v_mfma_f32_16x16x32_bf16 a[{d*4}:{d*4+3}], v[{64+a*4}:{67+a*4}], v[{64+b*4}:{67+b*4}], a[{d*4}:{d*4+3}]\n" for d,a,b in seq)
    build(name, timed(body, n_iter, ""), lds=65536)
    cfgs.append((name, len(seq)*n_iter))
def K(s,tau): return (2*s+tau)%6
def Q(t,s): return 6+((t*2+s)%10)
p0=[]; p1=[]; p2=[]; p3=[]
for s in range(8):
    o=[(t,0) for t in range(5)]+[(t,1) for t in reversed(range(5))]
    p0+=[(t*2+tau,K(s,tau),Q(t,s)) for t,tau in o]
    p1+=[(t*2+(tau^(s&1)),K(s,tau^(s&1)),Q(t,s)) for t,tau in o]
for s in range(0,8,2):
    flip=0
    for tau in (0,1):
        ts = range(5) if tau==0 else reversed(range(5))
        for t in ts:
            a,b=(s,s+1) if not flip else (s+1,s)
            tt = tau ^ ((s>>1)&1)
            p2+=[(t*2+tt,K(a,tt),Q(t,a)),(t*2+tt,K(b,tt),Q(t,b))]
            flip^=1
        flip^=0
for t in range(5):
    for tau in (0,1):
        for s in range(8): p3.append((t*2+tau,K(s,tau),Q(t,s)))
gen('c_p0',p0); gen('c_p1',p1); gen('c_p2',p2); gen('c_p3',p3)
open('run12.sh','w').write("for r in 1 2 3 4; do\n"+"\n".join(f"./bench {n}.co mb_kernel 256 256 65536 40 0 && echo nmfma {c}" for n,c in cfgs)+"\ndone\n")
```
